```python
import torch

def _softmax(x, axis=-1):
    return torch.softmax(x, dim=axis)
def _gelu(x):
    return torch.nn.functional.gelu(x, approximate="tanh")
def _silu(x):
    return torch.nn.functional.silu(x)
def _sigmoid(x):
    return torch.sigmoid(x)
def _layernorm(x, axis=-1, eps=1e-5):
    m = x.mean(dim=axis, keepdim=True)
    v = x.var(dim=axis, keepdim=True, unbiased=False)
    return (x - m) / torch.sqrt(v + eps)
def _scatter_add(tgt, idx, src, axis=0):
    return tgt.clone().index_add_(axis, idx, src)
def _segment_sum(src, seg, n):
    out = torch.zeros((n,) + src.shape[1:], dtype=src.dtype)
    return out.index_add_(0, seg, src)
def _pad(x, pw):
    flat = tuple(v for pair in reversed(pw) for v in pair)
    return torch.nn.functional.pad(x, flat)

kernel_name = 'concat_heads__linear_attn_block__ssm_conv_s4d__prompt'

def setup_inputs():

    _w = (lambda a: (lambda t: t.to(torch.bfloat16) if t.is_floating_point() else t)(torch.as_tensor(a)))
    def _A_setup():
        B, S, D = 1, 2048, 448
        return {
            "x": _w((lambda *s: torch.randn(*s, dtype=torch.bfloat16) * 0.05)(B, S, D)),
            "wqkv": _w((lambda *s: torch.randn(*s, dtype=torch.bfloat16) * 0.8)(D, 3 * D)),
            "wo": _w((lambda *s: torch.randn(*s, dtype=torch.bfloat16) * 0.05)(D, D)),
        }
    _A_in = _A_setup()

    def _B_setup():
        Bsz, L, D, N = 1, 2048, 448, 256
        return {
            "u": _w((lambda *s: torch.randn(*s, dtype=torch.bfloat16) * 0.05)(Bsz, L, D)),
            "log_A_real": _w((lambda *s: torch.randn(*s, dtype=torch.bfloat16) * 3.2)(D, N) * 0.5),
            "A_imag": _w((lambda *s: torch.randn(*s, dtype=torch.bfloat16) * 0.05)(D, N) * 3.14),
            "C_real": _w((lambda *s: torch.randn(*s, dtype=torch.bfloat16) * 0.2)(D, N) / N ** 0.5),
            "C_imag": _w((lambda *s: torch.randn(*s, dtype=torch.bfloat16) * 0.4)(D, N) / N ** 0.5),
            "log_dt": _w((lambda *s: torch.randn(*s, dtype=torch.bfloat16) * 0.05)(D) * 0.5 - 4.0),
            "D_skip": _w((lambda *s: torch.randn(*s, dtype=torch.bfloat16) * 0.05)(D)),
        }
    _B_in = _B_setup()

    return {
        "A_x": _A_in["x"],
        "A_wqkv": _A_in["wqkv"],
        "A_wo": _A_in["wo"],
        "B_u": _B_in["u"],
        "B_log_A_real": _B_in["log_A_real"],
        "B_A_imag": _B_in["A_imag"],
        "B_C_real": _B_in["C_real"],
        "B_C_imag": _B_in["C_imag"],
        "B_log_dt": _B_in["log_dt"],
        "B_D_skip": _B_in["D_skip"],
    }

def reference(A_x, A_wqkv, A_wo, B_u, B_log_A_real, B_A_imag, B_C_real, B_C_imag, B_log_dt, B_D_skip):
    def _A_ref(x, wqkv, wo):
        B, S, D = x.shape
        H = 16; Dh = D // H
        qkv = (lambda x, *d: x.permute(*d))((x @ wqkv).reshape(B, S, 3, H, Dh), 2, 0, 3, 1, 4)
        q, k, v = qkv[0], qkv[1], qkv[2]
        phi = lambda t: torch.where(t > 0, t + 1, torch.exp(t)) + 1e-6
        pq, pk = phi(q), phi(k)
        kv = torch.einsum("bhsd,bhse->bhde", pk, v)
        z = torch.einsum("bhsd->bhd", pk)
        num = torch.einsum("bhqd,bhde->bhqe", pq, kv)
        den = torch.einsum("bhqd,bhd->bhq", pq, z)[..., None] + 1e-6
        o = num / den
        return (lambda x, *d: x.permute(*d))(o, 0, 2, 1, 3).reshape(B, S, D) @ wo

    def _B_ref(u, log_A_real, A_imag, C_real, C_imag, log_dt, D_skip):
        L = u.shape[1]
        dt = torch.exp(log_dt)
        A = -torch.exp(log_A_real) + 1j * A_imag
        C = (C_real + 1j * C_imag) * dt[:, None]
        pos = (lambda x, dt: x.to(dt))(torch.arange(L), log_dt.dtype)
        P = torch.exp((A * dt[:, None])[:, :, None] * pos[None, None, :])
        K = 2.0 * torch.einsum("dn,dnl->dl", C, P).real
        L2 = 2 * L
        u_t = (lambda x, *d: x.permute(*d))(u, 0, 2, 1)
        Kf = (lambda x, *a, **k: torch.fft.rfft(x.float(), *a, **k))(K, L2)
        Uf = (lambda x, *a, **k: torch.fft.rfft(x.float(), *a, **k))(u_t, L2)
        y = (lambda x, *a, **k: torch.fft.irfft(x, *a, **k).to(torch.bfloat16))(Uf * Kf[None, :, :], L2)[:, :, :L]
        y = (lambda x, *d: x.permute(*d))(y, 0, 2, 1)
        return y + u * D_skip[None, None, :]

    a = _A_ref(A_x, A_wqkv, A_wo)
    b = _B_ref(B_u, B_log_A_real, B_A_imag, B_C_real, B_C_imag, B_log_dt, B_D_skip)
    return torch.concatenate([a, b], axis=-1)
```

```python
import re

TRANS = ("v_exp_f32", "v_log_f32", "v_rcp_f32", "v_rsq_f32", "v_sqrt_f32", "v_sin_f32", "v_cos_f32",
         "v_exp_f16", "v_log_f16", "v_rcp_f16", "v_rsq_f16", "v_sqrt_f16", "v_sin_f16", "v_cos_f16", "v_rcp_iflag_f32")

def _regs(tok):
    tok = tok.strip()
    tok = tok.lstrip("-").strip("|")
    m = re.fullmatch(r"abs\((.*)\)", tok)
    if m: tok = m.group(1)
    tok = tok.strip("|")
    out = set()
    m = re.fullmatch(r"([vsa])(\d+)", tok)
    if m:
        out.add((m.group(1), int(m.group(2)))); return out
    m = re.fullmatch(r"([vsa])\[(\d+):(\d+)\]", tok)
    if m:
        for i in range(int(m.group(2)), int(m.group(3)) + 1): out.add((m.group(1), i))
        return out
    if tok in ("vcc", "vcc_lo", "vcc_hi"): out.add(("x", "vcc"))
    elif tok in ("exec", "exec_lo", "exec_hi"): out.add(("x", "exec"))
    elif tok == "m0": out.add(("x", "m0"))
    return out

class Ins:
    def __init__(self, text):
        self.text = text
        t = text.split(";")[0].strip()
        self.is_label = t.endswith(":") and " " not in t
        self.is_dir = t.startswith(".") and not self.is_label
        self.op = ""
        self.dst = set(); self.src = set()
        self.srcC = set(); self.srcAB = set()
        self.kind = "other"
        self.ws = 1
        if not t or self.is_label or self.is_dir:
            self.ws = 0; return
        parts = t.split(None, 1)
        self.op = op = parts[0]
        rest = parts[1] if len(parts) > 1 else ""
        ops = []; cur = ""; depth = 0
        for ch in rest:
            if ch in "[(": depth += 1
            if ch in "])": depth -= 1
            if ch == "," and depth == 0: ops.append(cur); cur = ""
            else: cur += ch
        if cur.strip(): ops.append(cur)
        mods = ""
        if ops:
            last = ops[-1].strip().split(None, 1)
            ops[-1] = last[0]
            if len(last) > 1: mods = last[1]
        self.mods = mods
        R = [_regs(o) for o in ops]
        base = re.sub(r"_(e32|e64|dpp|sdwa)$", "", op)
        self.base = base
        if op == "s_nop":
            self.kind = "nop"; self.ws = int(ops[0], 0) + 1
        elif op.startswith("v_mfma"):
            self.kind = "mfma"
            self.dst = R[0]; self.srcAB = R[1] | R[2]; self.srcC = R[3]; self.src = self.srcAB | self.srcC
            self.passes = 8 if "32x32" in op else 4
        elif op.startswith("v_"):
            self.kind = "valu"
            self.trans = base in TRANS
            self.dpp = op.endswith("_dpp") or "quad_perm" in mods or "row_" in mods or "wave_" in mods
            if base.startswith("v_cmp"):
                self.dst = R[0]; self.src = set().union(*R[1:])
                if base.startswith("v_cmpx"): self.dst = self.dst | {("x", "exec")}
            elif base in ("v_add_co_u32", "v_sub_co_u32", "v_subrev_co_u32", "v_addc_co_u32", "v_subb_co_u32", "v_mad_u64_u32", "v_div_scale_f32"):
                self.dst = R[0] | R[1]; self.src = set().union(*R[2:])
            elif base in ("v_permlane32_swap_b32", "v_permlane16_swap_b32", "v_swap_b32"):
                self.dst = R[0] | R[1]; self.src = R[0] | R[1]
            else:
                self.dst = R[0]; self.src = set().union(*R[1:]) if len(R) > 1 else set()
                if base in ("v_fmac_f32", "v_pk_fmac_f16", "v_fma_mixlo_f16", "v_fma_mixhi_f16", "v_writelane_b32", "v_dot2c_f32_bf16") or self.dpp or "dst_sel:WORD" in mods or "dst_sel:BYTE" in mods:
                    self.src = self.src | self.dst
            self.moves_bits = ("dst_sel:WORD" in mods or "dst_sel:BYTE" in mods or base in ("v_fma_mixhi_f16",))
        elif op.startswith("ds_"):
            self.kind = "ds"
            if op.startswith(("ds_read", "ds_bpermute", "ds_permute", "ds_swizzle")) or "_rtn" in op:
                self.dst = R[0]; self.src = set().union(*R[1:])
            else:
                self.src = set().union(*R)
        elif op.startswith(("buffer_", "global_", "flat_")):
            self.kind = "vmem"
            self.lds = bool(re.search(r"\blds\b", mods)) or "_lds_" in op
            if "store" in op or ("atomic" in op):
                self.src = set().union(*R) if R else set()
                self.data = R[0] if op.startswith("buffer_") else (R[1] if len(R) > 1 else set())
                if "atomic" in op and "sc0" in mods: self.dst = R[0]
                self.wide = ("x3" in op or "x4" in op)
            elif "load" in op:
                if self.lds:
                    self.src = set().union(*R) | {("x", "m0")}
                else:
                    self.dst = R[0]; self.src = set().union(*R[1:])
        elif op.startswith("s_"):
            self.kind = "salu"
            if op.startswith(("s_cmp", "s_cbranch", "s_branch", "s_waitcnt", "s_barrier", "s_endpgm", "s_sleep", "s_setprio", "s_bitcmp")):
                self.src = set().union(*R) if R else set()
            else:
                self.dst = R[0] if R else set(); self.src = set().union(*R[1:]) if len(R) > 1 else set()
                if "saveexec" in op: self.dst = self.dst | {("x", "exec")}
            if op.startswith(("s_cbranch", "s_branch")): self.target = ops[0].strip()

def need(p, c):
    n = 0
    if p.kind == "valu":
        vd = {r for r in p.dst if r[0] in "va"}
        sd = {r for r in p.dst if r[0] == "s" or r == ("x", "vcc")}
        if c.kind == "mfma":
            if vd & c.src: n = max(n, 2)
            if ("x", "exec") in p.dst: n = max(n, 4)
        if c.kind == "valu":
            if p.trans and not c.trans and (vd & c.src): n = max(n, 1)
            if p.trans and c.trans and (vd & c.src): n = max(n, 1)
            if c.dpp and (vd & c.src): n = max(n, 2)
            if c.base.startswith("v_permlane") and (vd & c.src): n = max(n, 2)
            if c.base in ("v_readfirstlane_b32", "v_readlane_b32") and (vd & c.src): n = max(n, 1)
            if sd & c.src:
                n = max(n, 4 if c.base in ("v_readlane_b32", "v_writelane_b32") else 2)
            if c.base == "v_cndmask_b32" and ("x","vcc") in p.dst and ("x","vcc") in c.src: n = max(n, 2)
            if p.moves_bits and (vd & (c.src | c.dst)): n = max(n, 1)
            if ("x", "exec") in p.dst: n = max(n, 5 if c.dpp else 4)
        if c.kind == "vmem" and (sd & c.src): n = max(n, 5)
        if p.trans and c.kind in ("ds", "vmem") and (vd & c.src): n = max(n, 1)
    elif p.kind == "mfma":
        big = 12 if p.passes == 8 else 8
        if c.kind == "mfma":
            if p.dst & c.srcAB: n = max(n, big)
            if p.dst & c.srcC:
                if not (c.srcC == p.dst and c.passes == p.passes): n = max(n, big - 2)
            elif p.dst & c.dst: n = max(n, big)
        elif c.kind in ("valu", "ds", "vmem"):
            if p.dst & (c.src | c.dst): n = max(n, big)
            if c.kind == "valu" and (p.srcC & c.dst): n = max(n, 7 if p.passes == 8 else 3)
    elif p.kind == "salu":
        if ("x", "m0") in p.dst and c.kind == "vmem" and getattr(c, "lds", False): n = max(n, 1)
    elif p.kind == "vmem":
        if getattr(p, "wide", False) and (p.data & c.dst): n = max(n, 2 if c.kind == "valu" else 1)
    return n

MAXW = 12
def fix_hazards(lines):
    ins = [Ins(l) for l in lines]
    labels = {i.text.split(";")[0].strip()[:-1]: k for k, i in enumerate(ins) if i.is_label}
    br_into = {}
    for k, i in enumerate(ins):
        if hasattr(i, "target") and i.target in labels:
            br_into.setdefault(labels[i.target], []).append(k)
    pad = [0] * len(ins)
    def back_need(k, c, dist, depth=0):
        n = 0
        j = k - 1
        while j >= 0 and dist < MAXW:
            p = ins[j]
            if p.is_label:
                if depth < 3:
                    for b in br_into.get(j, []):
                        n = max(n, back_need(b, c, dist + 1 + pad[b], depth + 1))
                jj = j - 1
                while jj >= 0 and (ins[jj].ws == 0): jj -= 1
                if jj >= 0 and ins[jj].op in ("s_branch", "s_endpgm"): return n
            elif p.ws:
                r = need(p, c) - dist
                if r > n: n = r
                dist += p.ws + pad[j]
            j -= 1
        return n
    for it in range(3):
        changed = False
        for k, c in enumerate(ins):
            if c.ws == 0 or c.kind in ("nop",): continue
            n = back_need(k, c, 0)
            if n > pad[k]:
                pad[k] = n; changed = True
        if not changed: break
    out = []
    for k, c in enumerate(ins):
        n = pad[k]
        while n > 0:
            m = min(n, 16)
            out.append("  s_nop %d" % (m - 1)); n -= m
        out.append(c.text if (c.is_label or c.is_dir) else "  " + c.text.strip())
    return out

class Asm:
    def __init__(self): self.lines = []
    def __call__(self, s, *a):
        if a: s = s % a
        for l in s.split("\n"):
            l = l.strip()
            if l: self.lines.append(l)
    def label(self, n): self.lines.append(n + ":")
    def text(self): return "\n".join(fix_hazards(self.lines)) + "\n"

def vr(a, n=1): return "v%d" % a if n == 1 else "v[%d:%d]" % (a, a + n - 1)
def sr(a, n=1): return "s%d" % a if n == 1 else "s[%d:%d]" % (a, a + n - 1)
def ar(a, n=1): return "a%d" % a if n == 1 else "a[%d:%d]" % (a, a + n - 1)

def kernel_desc(name, vgpr, sgpr=102, accum=None, extra=""):
    if accum is None: accum = (vgpr + 3) // 4 * 4
    return """.section .rodata,"a"
.p2align 6
.amdhsa_kernel %s
  .amdhsa_next_free_vgpr %d
  .amdhsa_next_free_sgpr %d
  .amdhsa_accum_offset %d
  .amdhsa_group_segment_fixed_size 0
  .amdhsa_kernarg_size 104
  .amdhsa_user_sgpr_count 2
  .amdhsa_user_sgpr_kernarg_segment_ptr 1
  .amdhsa_system_sgpr_workgroup_id_x 1
%s.end_amdhsa_kernel
""" % (name, vgpr, sgpr, accum, extra)
```

```python
from asmlib import *
import struct
def f32bits(x): return struct.unpack("<I", struct.pack("<f", x))[0]
def hexf(x): return "0x%08x" % f32bits(x)

WS_PQ  = 0x000000
WS_WOF = 0x200000
WS_UT  = 0x280000
WS_K   = 0x440000
KROW   = 4224
WS_KS  = 0x610000
WS_KV  = 0x620000
KVH    = 3328
WS_SIZE = 0x640000

class Alloc:
    def __init__(self, start, end): self.n = start; self.end = end; self.hi = start
    def __call__(self, cnt=1, align=1):
        if cnt >= 2 and align == 1: align = 2
        if cnt >= 4 and align == 2: align = 4
        a = (self.n + align - 1) // align * align
        self.n = a + cnt
        assert self.n <= self.end, "out of registers"
        self.hi = max(self.hi, self.n)
        return a
    def mark(self): return self.n
    def release(self, m): self.n = m

class Lgkm:
    def __init__(self, a): self.a = a; self.issued = 0; self.done = 0
    def op(self, s, *args):
        self.a(s, *args); self.issued += 1
        assert self.issued - self.done <= 15 or True
        return self.issued
    def wait(self, ticket):
        if ticket <= self.done: return
        n = self.issued - ticket
        assert n <= 15, "too many outstanding LDS ops after ticket"
        self.a("s_waitcnt lgkmcnt(%d)" % n); self.done = ticket
    def wait_all(self):
        if self.done < self.issued:
            self.a("s_waitcnt lgkmcnt(0)"); self.done = self.issued

def srd(a, d, base, size):
    a("s_mov_b32 s%d, s%d" % (d, base))
    a("s_mov_b32 s%d, s%d" % (d + 1, base + 1))
    a("s_mov_b32 s%d, 0x%x" % (d + 2, size))
    a("s_mov_b32 s%d, 0x20000" % (d + 3))

def cmul(a, d, p, q):
    a("v_pk_mul_f32 %s, %s, %s op_sel:[0,0] op_sel_hi:[0,1]" % (vr(d,2), vr(p,2), vr(q,2)))
    a("v_pk_fma_f32 %s, %s, %s, %s op_sel:[1,1,0] op_sel_hi:[1,0,1] neg_lo:[1,0,0]" % (vr(d,2), vr(p,2), vr(q,2), vr(d,2)))

def wave_max_u32(a, v, sdst):
    for sh in (1, 2, 4, 8):
        a("v_max_u32_dpp v%d, v%d, v%d row_shr:%d row_mask:0xf bank_mask:0xf" % (v, v, v, sh))
    a("v_max_u32_dpp v%d, v%d, v%d row_bcast:15 row_mask:0xa bank_mask:0xf" % (v, v, v))
    a("v_max_u32_dpp v%d, v%d, v%d row_bcast:31 row_mask:0xc bank_mask:0xf" % (v, v, v))
    a("v_readlane_b32 s%d, v%d, 63" % (sdst, v))
```

```python
from gen_common import *
import math

SLOT = 32768
AUX = 3 * SLOT
K1_LDS = AUX + 61440
LOG2E = 1.4426950408889634
QL = {0:0, 1:1, 3:2, 5:3, 8:4, 10:5, 12:6}
MISC = (7, 14)

def gen_k1(a):
    a(".p2align 8")
    a.label("p1_kernel")
    a("s_cmp_ge_u32 s2, 256")
    a("s_cbranch_scc1 L1_end")
    a("s_load_dwordx16 s[32:47], s[0:1], 0")
    a("s_load_dwordx8 s[48:55], s[0:1], 64")
    a("s_load_dwordx2 s[56:57], s[0:1], 96")
    a("s_and_b32 s60, s2, 7")
    a("s_lshr_b32 s61, s2, 3")
    a("s_lshr_b32 s20, s60, 1")
    a("s_lshl_b32 s20, s20, 2")
    a("s_and_b32 s62, s61, 3")
    a("s_add_u32 s20, s20, s62")
    a("s_and_b32 s21, s60, 1")
    a("s_lshl_b32 s21, s21, 3")
    a("s_lshr_b32 s62, s61, 2")
    a("s_add_u32 s21, s21, s62")
    tab = 0
    for h in range(16): tab |= QL.get(h, 15) << (4 * h)
    a("s_mov_b32 s62, 0x%08x" % (tab & 0xffffffff))
    a("s_mov_b32 s63, 0x%08x" % (tab >> 32))
    a("s_lshl_b32 s64, s21, 2")
    a("s_lshr_b64 s[62:63], s[62:63], s64")
    a("s_and_b32 s23, s62, 15")
    a("v_lshrrev_b32 v1, 6, v0")
    a("v_and_b32 v0, 63, v0")
    a("v_readfirstlane_b32 s22, v1")
    a("s_waitcnt lgkmcnt(0)")
    srd(a, 12, 56, WS_SIZE)
    a("s_cmp_ge_u32 s22, 4")
    a("s_cbranch_scc1 L1_aux")
    gemm_path(a)
    a.label("L1_aux")
    aux_path(a)
    a.label("L1_end")
    a("s_endpgm")

def gemm_path(a):
    V = Alloc(1, 256)
    srd(a, 4, 32, 2048 * 896)
    srd(a, 8, 34, 448 * 2688)
    srd(a, 16, 54, 256)
    vt = [V() for _ in range(6)]
    vXo = V(); vKo = V(); vQo = [V(), V()]
    vA = [V(), V()]; vB = [V(), V()]; vQ = [V() for _ in range(4)]
    t0, t1, t2, t3, t4, t5 = vt
    a("v_lshrrev_b32 v%d, 3, v0" % t0)
    a("v_and_b32 v%d, 7, v0" % t1)
    a("v_xor_b32 v%d, v%d, v%d" % (t2, t1, t0))
    a("s_lshl_b32 s60, s20, 7")
    a("s_lshl_b32 s61, s22, 5")
    a("s_add_u32 s60, s60, s61")
    a("v_add_u32 v%d, s60, v%d" % (t3, t0))
    a("v_mul_u32_u24 v%d, 896, v%d" % (t3, t3))
    a("v_lshl_add_u32 v%d, v%d, 4, v%d" % (vXo, t2, t3))
    a("v_lshrrev_b32 v%d, 2, v0" % t2)
    a("s_lshl_b32 s60, s22, 4")
    a("v_add_u32 v%d, s60, v%d" % (t2, t2))
    a("v_mul_u32_u24 v%d, 2688, v%d" % (t2, t2))
    a("v_lshrrev_b32 v%d, 4, v0" % t3)
    a("v_and_b32 v%d, 2, v%d" % (t3, t3))
    a("v_and_b32 v%d, 3, v0" % t4)
    a("v_xor_b32 v%d, v%d, v%d" % (t3, t3, t4))
    a("v_lshl_add_u32 v%d, v%d, 4, v%d" % (t2, t3, t2))
    a("s_mul_i32 s61, s21, 56")
    a("s_add_u32 s61, s61, 896")
    a("v_add_u32 v%d, s61, v%d" % (vKo, t2))
    a("v_add_u32 v%d, s60, v%d" % (t2, t0))
    a("v_mul_u32_u24 v%d, 2688, v%d" % (t2, t2))
    a("s_lshl_b32 s61, s23, 7")
    a("v_add_u32 v%d, s61, v%d" % (t2, t2))
    a("v_lshrrev_b32 v%d, 3, v0" % t3)
    a("v_and_b32 v%d, 2, v%d" % (t3, t3))
    a("v_xor_b32 v%d, v%d, v%d" % (t3, t3, t1))
    a("v_lshl_add_u32 v%d, v%d, 4, v%d" % (vQo[0], t3, t2))
    a("v_xor_b32 v%d, 4, v%d" % (t3, t3))
    a("v_lshl_add_u32 v%d, v%d, 4, v%d" % (vQo[1], t3, t2))
    a("v_add_u32 v%d, %d, v%d" % (vQo[1], 8 * 2688, vQo[1]))
    a("s_lshl_b32 s60, s20, 1")
    a("s_add_u32 s60, s60, s21")
    a("s_mul_i32 s61, s60, 37")
    a("s_lshr_b32 s61, s61, 8")
    a("s_mul_i32 s61, s61, 7")
    a("s_sub_u32 s24, s60, s61")
    a("s_lshl_b32 s25, s22, 10")
    a("s_mov_b32 s26, 0")
    def issue(hasq):
        a("s_lshl_b32 s60, s24, 7")
        a("s_mul_i32 s61, s24, %d" % (64 * 2688))
        a("s_lshl_b32 s62, s25, 2")
        a("s_add_u32 s62, s62, s26")
        a("s_add_u32 s63, s25, s26")
        a("s_add_u32 m0, s63, 16384")
        a("buffer_load_dwordx4 v%d, s[8:11], s61 offen lds" % vKo)
        a("s_add_u32 m0, s63, 20480")
        a("s_add_u32 s64, s61, 896")
        a("buffer_load_dwordx4 v%d, s[8:11], s64 offen lds" % vKo)
        for j in range(4):
            a("s_add_u32 m0, s62, %d" % (1024 * j))
            if j: a("s_add_u32 s60, s60, 7168")
            a("buffer_load_dwordx4 v%d, s[4:7], s60 offen lds" % vXo)
        if hasq:
            a("s_add_u32 s63, s63, s25")
            for e in range(2):
                a("s_add_u32 m0, s63, %d" % (24576 + 1024 * e))
                a("buffer_load_dwordx4 v%d, s[8:11], s61 offen lds" % vQo[e])
        a("s_add_u32 s24, s24, 1")
        a("s_cmp_eq_u32 s24, 7")
        a("s_cselect_b32 s24, 0, s24")
        a("s_add_u32 s26, s26, %d" % SLOT)
        a("s_cmp_eq_u32 s26, %d" % (3 * SLOT))
        a("s_cselect_b32 s26, 0, s26")
    a("s_cmp_eq_u32 s23, 15")
    a("s_cbranch_scc1 L1_pro_noq")
    for _ in range(3): issue(True)
    a("s_branch L1_pro_done")
    a.label("L1_pro_noq")
    for _ in range(3): issue(False)
    a.label("L1_pro_done")
    a("v_and_b32 v%d, 15, v0" % t0)
    a("v_lshrrev_b32 v%d, 4, v0" % t1)
    a("s_lshl_b32 s60, s22, 12")
    a("v_and_b32 v%d, 7, v%d" % (t2, t0))
    a("v_xor_b32 v%d, v%d, v%d" % (t2, t2, t1))
    a("v_lshlrev_b32 v%d, 4, v%d" % (t2, t2))
    a("v_lshl_add_u32 v%d, v%d, 7, v%d" % (t2, t0, t2))
    a("v_add_u32 v%d, s60, v%d" % (vA[0], t2))
    a("v_xor_b32 v%d, 64, v%d" % (vA[1], vA[0]))
    a("v_lshrrev_b32 v%d, 2, v%d" % (t2, t0))
    a("v_lshl_add_u32 v%d, v%d, 3, v%d" % (t2, t1, t2))
    a("v_and_b32 v%d, 3, v%d" % (t3, t0))
    a("v_lshlrev_b32 v%d, 3, v%d" % (t3, t3))
    a("v_and_b32 v%d, 1, v%d" % (t4, t1))
    a("v_lshl_add_u32 v%d, v%d, 6, v%d" % (t5, t2, t3))
    a("v_lshl_add_u32 v%d, v%d, 5, v%d" % (t5, t4, t5))
    a("v_add_u32 v%d, 16384, v%d" % (vB[0], t5))
    a("v_xor_b32 v%d, 32, v%d" % (vB[1], vB[0]))
    a("v_lshl_add_u32 v%d, v%d, 7, v%d" % (t5, t2, t3))
    a("v_lshrrev_b32 v%d, 3, v%d" % (t3, t0))
    a("v_lshl_add_u32 v%d, v%d, 1, v%d" % (t3, t4, t3))
    a("v_lshl_add_u32 v%d, v%d, 5, v%d" % (t5, t3, t5))
    a("v_add_u32 v%d, 24576, v%d" % (vQ[0], t5))
    for t in range(1, 4):
        a("v_xor_b32 v%d, %d, v%d" % (vQ[t], 32 * t, vQ[0]))
    accKV = [[V(4) for _ in range(4)] for _ in range(2)]
    accQ = [[V(4) for _ in range(4)] for _ in range(2)]
    EPS = hexf(1e-6)
    for m in range(2):
        for t in range(4):
            for j in range(4):
                a("v_mov_b32 v%d, %s" % (accKV[m][t] + j, EPS if t < 2 else "0"))
                a("v_mov_b32 v%d, %s" % (accQ[m][t] + j, EPS))
    mk = V.mark()
    fA = [[V(4) for _ in range(2)] for _ in range(2)]
    fB = [[V(4) for _ in range(4)] for _ in range(2)]
    fQ = [[V(4) for _ in range(4)] for _ in range(2)]
    a("s_mov_b32 s27, 0")
    a("s_mov_b32 s28, 0")
    a("s_mov_b32 s29, %d" % SLOT)
    def loop(hasq, lab):
        n = 8 if hasq else 6
        a.label(lab)
        a("s_cmp_eq_u32 s27, 0")
        a("s_cbranch_scc0 %s_w1" % lab)
        a("s_waitcnt vmcnt(%d)" % (2 * n))
        a("s_branch %s_w2" % lab)
        a.label(lab + "_w1")
        a("s_waitcnt vmcnt(%d)" % n)
        a("s_cmp_eq_u32 s27, 6")
        a("s_cbranch_scc0 %s_w2" % lab)
        a("s_waitcnt vmcnt(0)")
        a.label(lab + "_w2")
        a("s_barrier")
        L = Lgkm(a)
        def rA(s):
            return [("ds_read_b128 %s, v%d offset:%d" % (vr(fA[s][m], 4), vA[s], 2048 * m)) for m in range(2)]
        def rB(s):
            r = []
            for t in range(4):
                for hf in range(2):
                    r.append("ds_read_b64_tr_b16 %s, v%d offset:%d" % (vr(fB[s][t] + 2 * hf, 2), vB[t & 1], 256 * hf + 2048 * s + 4096 * (t >> 1)))
            return r
        def rQ(s):
            r = []
            for t in range(4):
                for hf in range(2):
                    r.append("ds_read_b64_tr_b16 %s, v%d offset:%d" % (vr(fQ[s][t] + 2 * hf, 2), vQ[t], 512 * hf + 4096 * s))
            return r
        def mKV(s):
            return ["v_mfma_f32_16x16x32_bf16 %s, %s, %s, %s" % (vr(accKV[m][t], 4), vr(fA[s][m], 4), vr(fB[s][t], 4), vr(accKV[m][t], 4)) for t in range(4) for m in range(2)]
        def mQ(s):
            return ["v_mfma_f32_16x16x32_bf16 %s, %s, %s, %s" % (vr(accQ[m][t], 4), vr(fQ[s][t], 4), vr(fA[s][m], 4), vr(accQ[m][t], 4)) for t in range(4) for m in range(2)]
        if hasq:
            groups = [(rA(0) + rB(0), mKV(0)), (rQ(0), mQ(0)), (rA(1) + rB(1), mKV(1)), (rQ(1), mQ(1))]
        else:
            groups = [(rA(0) + rB(0), mKV(0)), (rA(1) + rB(1), mKV(1))]
        reads = []; ends = []
        for g, _ in groups:
            reads += g; ends.append(len(reads))
        pos = 0
        def issue_reads(k):
            nonlocal pos
            while k > 0 and pos < len(reads):
                L.op(reads[pos]); pos += 1; k -= 1
        issue_reads(14)
        a("s_sub_u32 s60, s27, 1")
        a("s_cmp_lt_u32 s60, 4")
        a("s_cbranch_scc0 %s_ni" % lab)
        issue(hasq)
        a.label(lab + "_ni")
        for gi, (_, mf) in enumerate(groups):
            L.wait(ends[gi])
            for k, mm in enumerate(mf):
                a(mm)
                room = 14 - (L.issued - L.done)
                issue_reads(min(2, room))
        assert pos == len(reads)
        a("s_add_u32 s28, s28, %d" % SLOT)
        a("s_cmp_eq_u32 s28, %d" % (3 * SLOT))
        a("s_cselect_b32 s28, 0, s28")
        a("s_cselect_b32 s60, %d, s29" % (-2 * SLOT))
        for r in vA + vB + (vQ if hasq else []):
            a("v_add_u32 v%d, s60, v%d" % (r, r))
        a("s_add_u32 s27, s27, 1")
        a("s_cmp_lt_u32 s27, 7")
        a("s_cbranch_scc1 %s" % lab)
    a("s_cmp_eq_u32 s23, 15")
    a("s_cbranch_scc1 L1_loop_noq")
    loop(True, "L1_loop_q")
    a("s_branch L1_loop_done")
    loop(False, "L1_loop_noq")
    a.label("L1_loop_done")
    V.release(mk)
    cL = V(2); cC = V(2); cE = V()
    a("v_mov_b32 v%d, %s" % (cL, hexf(LOG2E)));  a("v_mov_b32 v%d, %s" % (cL + 1, hexf(LOG2E)))
    a("v_mov_b32 v%d, %s" % (cC, hexf(-1e-6 * LOG2E))); a("v_mov_b32 v%d, %s" % (cC + 1, hexf(-1e-6 * LOG2E)))
    a("v_mov_b32 v%d, %s" % (cE, EPS))
    tm = [V(2) for _ in range(4)]
    def phi_pairs(pairs):
        for b in range(0, len(pairs), 4):
            bt = pairs[b:b + 4]
            for i, (s, d) in enumerate(bt):
                a("v_pk_fma_f32 %s, %s, %s, %s" % (vr(tm[i], 2), vr(s, 2), vr(cL, 2), vr(cC, 2)))
            for i, (s, d) in enumerate(bt):
                a("v_exp_f32_e64 v%d, v%d clamp" % (tm[i], tm[i]))
                a("v_max_f32 v%d, v%d, v%d" % (s, cE, s))
                a("v_exp_f32_e64 v%d, v%d clamp" % (tm[i] + 1, tm[i] + 1))
                a("v_max_f32 v%d, v%d, v%d" % (s + 1, cE, s + 1))
            for i, (s, d) in enumerate(bt):
                a("v_pk_add_f32 %s, %s, %s" % (vr(s, 2), vr(s, 2), vr(tm[i], 2)))
            for i, (s, d) in enumerate(bt):
                a("v_cvt_pk_bf16_f32 v%d, v%d, v%d" % (d, s, s + 1))
    kf = [V(4), V(4)]; vf = [V(4), V(4)]
    pairs = []
    for t in range(2):
        for m in range(2):
            for jj in range(2):
                pairs.append((accKV[m][t] + 2 * jj, kf[t] + 2 * m + jj))
    phi_pairs(pairs)
    for t in range(2):
        for m in range(2):
            for jj in range(2):
                s = accKV[m][2 + t] + 2 * jj
                a("v_cvt_pk_bf16_f32 v%d, v%d, v%d" % (vf[t] + 2 * m + jj, s, s + 1))
    a("v_and_b32 v%d, 15, v0" % t0)
    a("v_lshrrev_b32 v%d, 4, v0" % t1)
    a("v_cmp_eq_u32 s[60:61], 12, v%d" % t0)
    a("v_mov_b32 v%d, 0x3f803f80" % t2)
    for j in range(4):
        a("v_cndmask_b32 v%d, v%d, v%d, s[60:61]" % (vf[1] + j, vf[1] + j, t2))
    kvt = [V(4) for _ in range(4)]
    for te in range(2):
        for td in range(2):
            a("v_mfma_f32_16x16x32_bf16 %s, %s, %s, 0" % (vr(kvt[2 * te + td], 4), vr(vf[te], 4), vr(kf[td], 4)))
    vfl = V(); vfo = V()
    a("s_lshl_b32 s60, s21, 2")
    a("s_add_u32 s60, s60, 64")
    a("v_mov_b32 v%d, s60" % vfo)
    a("buffer_load_dword v%d, v%d, s[16:19], 0 offen sc0 sc1" % (vfl, vfo))
    a("v_lshlrev_b32 v%d, 4, v0" % t2)
    a("v_add_u32 v%d, s25, v%d" % (t3, t2))
    for tl in range(4):
        a("ds_write_b128 v%d, %s offset:%d" % (t3, vr(kvt[tl], 4), SLOT + 4096 * tl))
    a("s_lshl_b32 s60, s25, 2")
    a("v_add_u32 v%d, s60, v%d" % (t3, t2))
    a("s_waitcnt lgkmcnt(0)")
    a("s_barrier")
    for sw in range(4):
        a("ds_read_b128 %s, v%d offset:%d" % (vr(kvt[sw], 4), t3, SLOT + 1024 * sw))
    a("s_lshr_b32 s60, s22, 1")
    a("s_lshl_b32 s60, s60, 4")
    a("s_and_b32 s61, s22, 1")
    a("s_lshl_b32 s61, s61, 4")
    a("v_lshl_add_u32 v%d, v%d, 2, s60" % (t2, t1))
    a("v_add_u32 v%d, s61, v%d" % (t4, t0))
    a("v_mul_u32_u24 v%d, 112, v%d" % (t5, t2))
    a("v_lshl_add_u32 v%d, v%d, 2, v%d" % (t5, t4, t5))
    a("s_mul_i32 s60, s21, %d" % KVH)
    a("s_add_u32 s60, s60, 0x%x" % WS_KV)
    a("v_add_u32 v%d, s60, v%d" % (t5, t5))
    a("v_mov_b32 v%d, 0x7ff00000" % t3) if False else None
    vbig = V(); vadA = V(); vadB = V()
    a("v_mov_b32 v%d, 0x7ff00000" % vbig)
    a("v_cmp_gt_u32 s[60:61], 28, v%d" % t4)
    a("v_cmp_ne_u32 s[62:63], 28, v%d" % t2)
    a("s_and_b64 s[62:63], s[62:63], s[60:61]")
    a("v_cndmask_b32 v%d, v%d, v%d, s[60:61]" % (vadA, vbig, t5))
    a("v_cndmask_b32 v%d, v%d, v%d, s[62:63]" % (vadB, vbig, t5))
    a("s_waitcnt lgkmcnt(0)")
    for jj in range(2):
        a("v_pk_add_f32 %s, %s, %s" % (vr(kvt[0] + 2 * jj, 2), vr(kvt[0] + 2 * jj, 2), vr(kvt[1] + 2 * jj, 2)))
        a("v_pk_add_f32 %s, %s, %s" % (vr(kvt[2] + 2 * jj, 2), vr(kvt[2] + 2 * jj, 2), vr(kvt[3] + 2 * jj, 2)))
    for jj in range(2):
        a("v_pk_add_f32 %s, %s, %s" % (vr(kvt[0] + 2 * jj, 2), vr(kvt[0] + 2 * jj, 2), vr(kvt[2] + 2 * jj, 2)))
    a("s_mov_b32 s64, 0")
    a.label("L1_poll")
    a("s_waitcnt vmcnt(0)")
    a("v_readfirstlane_b32 s60, v%d" % vfl)
    a("s_cmp_lg_u32 s60, 0")
    a("s_cbranch_scc1 L1_polled")
    a("s_add_u32 s64, s64, 1")
    a("s_cmp_gt_u32 s64, 0x40000")
    a("s_cbranch_scc1 L1_polled")
    a("s_sleep 2")
    a("buffer_load_dword v%d, v%d, s[16:19], 0 offen sc0 sc1" % (vfl, vfo))
    a("s_branch L1_poll")
    a.label("L1_polled")
    for j in range(4):
        a("buffer_atomic_add_f32 v%d, v%d, s[12:15], 0 offen offset:%d" % (kvt[0] + j, vadA if j == 0 else vadB, 112 * j))
    a("s_cmp_eq_u32 s23, 15")
    a("s_cbranch_scc1 L1_end")
    vqa = [V() for _ in range(4)]
    for t in range(4):
        a("s_lshl_b32 s60, s23, 4")
        a("s_add_u32 s60, s60, %d" % (4 * t))
        a("v_add_u32 v%d, s60, v%d" % (t2, t1))
        a("v_mul_u32_u24 v%d, 147, v%d" % (t3, t2))
        a("v_lshrrev_b32 v%d, 10, v%d" % (t3, t3))
        a("v_mul_u32_u24 v%d, 7, v%d" % (t4, t3))
        a("v_sub_u32 v%d, v%d, v%d" % (t4, t2, t4))
        a("v_lshrrev_b32 v%d, 1, v%d" % (t5, t4))
        a("v_and_b32 v%d, 1, v%d" % (t4, t4))
        a("v_lshlrev_b32 v%d, 10, v%d" % (t3, t3))
        a("v_lshl_add_u32 v%d, v%d, 8, v%d" % (t3, t5, t3))
        a("v_lshl_add_u32 v%d, v%d, 3, v%d" % (t3, t4, t3))
        a("v_lshl_add_u32 v%d, v%d, 4, v%d" % (vqa[t], t0, t3))
    a("s_lshl_b32 s60, s20, 3")
    a("s_lshl_b32 s61, s22, 1")
    a("s_add_u32 s60, s60, s61")
    a("s_lshl_b32 s60, s60, 14")
    a("s_add_u32 s61, s60, 16384")
    qp = [V(2) for _ in range(8)]
    for m in range(2):
        pairs = []
        for t in range(4):
            for jj in range(2):
                pairs.append((accQ[m][t] + 2 * jj, qp[4 * m + t] + jj))
        phi_pairs(pairs)
        for t in range(4):
            a("buffer_store_dwordx2 %s, v%d, s[12:15], s%d offen" % (vr(qp[4 * m + t], 2), vqa[t], 60 + m))
    a("s_endpgm")
    print("k1 gemm vgpr hi", V.hi)

def aux_path(a):
    a("s_sub_u32 s22, s22, 4")
    srd(a, 16, 54, 256)
    a("s_cmp_eq_u32 s22, 0")
    a("s_cbranch_scc0 L1_noticket")
    a("s_lshl_b32 s60, s21, 2")
    a("v_mov_b32 v1, s60")
    a("v_mov_b32 v2, 1")
    a("s_mov_b64 s[62:63], exec")
    a("s_mov_b64 exec, 1")
    a("buffer_atomic_add v2, v1, s[16:19], 0 offen sc0")
    a("s_mov_b64 exec, s[62:63]")
    a.label("L1_noticket")
    a("s_cmp_eq_u32 s21, %d" % MISC[0])
    a("s_cbranch_scc1 L1_misc")
    a("s_cmp_eq_u32 s21, %d" % MISC[1])
    a("s_cbranch_scc1 L1_misc")
    kgen_path(a)
    a.label("L1_misc")
    misc_path(a)

def ticket_finish(a, lab, nvm_after):
    a("s_cmp_eq_u32 s22, 0")
    a("s_cbranch_scc0 %s" % lab)
    a("s_waitcnt vmcnt(%d)" % nvm_after)
    a("v_readfirstlane_b32 s60, v2")
    a("s_cmp_eq_u32 s60, 0")
    a("s_cbranch_scc0 %s" % lab)
    a("s_mul_i32 s60, s21, %d" % KVH)
    a("s_add_u32 s60, s60, 0x%x" % WS_KV)
    a("v_lshlrev_b32 v1, 4, v0")
    for r in range(4, 8): a("v_mov_b32 v%d, 0" % r)
    for j in range(3):
        a("buffer_store_dwordx4 v[4:7], v1, s[12:15], s60 offen offset:%d sc0 sc1" % (1024 * j))
    a("s_mov_b64 s[62:63], exec")
    a("s_mov_b64 exec, 0xffff")
    a("buffer_store_dwordx4 v[4:7], v1, s[12:15], s60 offen offset:3072 sc0 sc1")
    a("s_waitcnt vmcnt(0)")
    a("s_mov_b64 exec, 1")
    a("s_lshl_b32 s60, s21, 2")
    a("s_add_u32 s60, s60, 64")
    a("v_mov_b32 v1, s60")
    a("v_mov_b32 v2, 1")
    a("buffer_atomic_add v2, v1, s[16:19], 0 offen")
    a("s_mov_b64 exec, s[62:63]")
    a.label(lab)

def kgen_path(a):
    V = Alloc(8, 256)
    RS = 288
    a("s_mul_i32 s24, s20, 14")
    a("s_add_u32 s24, s24, s21")
    a("s_cmp_gt_u32 s21, 7");  a("s_subb_u32 s24, s24, 0")
    a("s_cmp_gt_u32 s21, 14"); a("s_subb_u32 s24, s24, 0")
    a("s_lshl_b32 s60, s24, 2")
    a("s_load_dword s26, s[48:49], s60")
    a("s_load_dword s27, s[50:51], s60")
    raw = [[V() for _ in range(4)] for _ in range(2)]
    vo = V()
    a("s_lshl_b32 s60, s24, 10")
    a("s_lshl_b32 s61, s22, 7")
    a("s_add_u32 s60, s60, s61")
    a("v_lshl_add_u32 v%d, v0, 1, s60" % vo)
    for c in range(2):
        for k in range(4):
            a("global_load_ushort v%d, v%d, s[%d:%d] offset:%d" % (raw[c][k], vo, 40 + 2 * k, 41 + 2 * k, 512 * c))
    ticket_finish(a, "L1_kg_tk", 8)
    a("s_mul_i32 s25, s22, 9216")
    a("s_add_u32 s25, s25, %d" % AUX)
    t0, t1, t2, t3 = V(), V(), V(), V()
    vW = [V() for _ in range(4)]
    a("v_lshl_add_u32 v%d, v0, 2, s25" % vW[0])
    for i in range(1, 4): a("v_add_u32 v%d, %d, v%d" % (vW[i], 4 * RS * i, vW[0]))
    vR = V()
    a("v_and_b32 v%d, 15, v0" % t0)
    a("v_lshrrev_b32 v%d, 4, v0" % t1)
    a("v_mul_u32_u24 v%d, %d, v%d" % (t2, RS, t0))
    a("v_lshl_add_u32 v%d, v%d, 4, v%d" % (t2, t1, t2))
    a("v_add_u32 v%d, s25, v%d" % (vR, t2))
    vPW = V(); vPR = V()
    a("v_lshl_add_u32 v%d, v0, 4, s25" % vPW)
    a("v_lshlrev_b32 v%d, 4, v0" % vPR)
    a("v_add_u32 v%d, %d, v%d" % (vPR, AUX + 4608, vPR))
    KC = 4608 + 3072
    vC0 = V(); vC1a = V(); vC1b = V(); vC2 = V()
    a("v_lshrrev_b32 v%d, 1, v%d" % (t2, t1))
    a("v_and_b32 v%d, 1, v%d" % (t3, t1))
    a("v_lshlrev_b32 v%d, 4, v%d" % (vC0, t0))
    a("v_lshl_add_u32 v%d, v%d, 8, v%d" % (vC0, t2, vC0))
    a("v_lshl_add_u32 v%d, v%d, 3, v%d" % (vC0, t3, vC0))
    a("v_add_u32 v%d, s25, v%d" % (vC0, vC0))
    a("v_cmp_gt_u32 s[60:61], 2, v%d" % t1)
    a("v_lshlrev_b32 v%d, 3, v%d" % (t2, t0))
    a("v_lshlrev_b32 v%d, 2, v%d" % (t3, t0))
    a("v_cndmask_b32 v%d, v%d, v%d, s[60:61]" % (t2, t3, t2))
    a("v_lshl_add_u32 v%d, v%d, 7, v%d" % (t2, t1, t2))
    a("v_add_u32 v%d, s25, v%d" % (vC1a, t2))
    a("v_mov_b32 v%d, 64" % t3)
    a("v_cndmask_b32 v%d, v%d, 4, s[60:61]" % (t3, t3))
    a("v_add_u32 v%d, v%d, v%d" % (vC1b, vC1a, t3))
    a("v_lshlrev_b32 v%d, 1, v%d" % (t2, t0))
    a("v_lshl_add_u32 v%d, v%d, 7, v%d" % (t2, t1, t2))
    a("v_add_u32 v%d, s25, v%d" % (vC2, t2))
    vE = [V() for _ in range(8)]
    a("s_lshl_b32 s60, s22, 9")
    a("v_lshl_add_u32 v%d, v0, 3, s60" % t0)
    for e in range(0, 8, 2):
        a("v_add_u32 v%d, %d, v%d" % (vE[e], e, t0))
        a("v_add_u32 v%d, %d, v%d" % (vE[e + 1], e + 1, t0))
        a("v_cvt_f32_u32 v%d, v%d" % (t1, vE[e]))
        a("v_cvt_f32_u32 v%d, v%d" % (t2, vE[e + 1]))
        a("v_cvt_pk_bf16_f32 v%d, v%d, v%d" % (t1, t1, t2))
        a("v_lshrrev_b32 v%d, 16, v%d" % (t2, t1))
        a("v_and_b32 v%d, 0xffff, v%d" % (t1, t1))
        for r, tt in ((vE[e], t1), (vE[e + 1], t2)):
            a("v_subrev_u32 v%d, 17024, v%d" % (tt, tt))
            a("v_min_u32 v%d, 128, v%d" % (r, r)) if False else a("v_min_u32 v%d, 0x80, v%d" % (r, r))
            a("v_max_i32 v%d, v%d, v%d" % (r, r, tt))
            a("v_lshl_add_u32 v%d, v%d, 1, s25" % (r, r))
    vSt = V()
    a("s_lshl_b32 s60, s22, 10")
    a("v_lshl_add_u32 v%d, v0, 4, s60" % vSt)
    Lhi = struct.unpack("<f", struct.pack("<I", f32bits(LOG2E) & 0xffffff00))[0]
    Llo = (LOG2E - Lhi) * math.log(2.0)
    c1 = struct.unpack("<f", struct.pack("<f", 1 / (2 * math.pi)))[0]
    c1lo = 1 / (2 * math.pi) - c1
    a("s_mov_b32 s64, %s" % hexf(c1))
    a("s_mov_b32 s65, %s" % hexf(c1lo))
    a("s_mov_b32 s66, %s" % hexf(8.0))
    a("s_mov_b32 s67, %s" % hexf(128.0))
    barriers = [0]
    def bar():
        a("s_barrier"); barriers[0] += 1
    def exp_bf16(x, d, tmp):
        a("v_mul_f32 v%d, %s, v%d" % (d, hexf(Lhi), x))
        a("v_mul_f32 v%d, %s, v%d" % (tmp, hexf(Llo), x))
        a("v_exp_f32 v%d, v%d" % (d, d))
        a("v_fma_f32 v%d, v%d, v%d, v%d" % (d, d, tmp, d))
        a("v_cvt_pk_bf16_f32 v%d, v%d, v%d" % (d, d, d))
        a("v_and_b32 v%d, 0xffff0000, v%d" % (d, d))
    mk = V.mark()
    for c in range(2):
        V.release(mk)
        L = Lgkm(a)
        if c == 0:
            a("s_waitcnt vmcnt(0) lgkmcnt(0)")
            bar()
        vdt = V(); vD = V()
        if c == 0:
            a("s_lshl_b32 s60, s26, 16"); a("s_lshl_b32 s61, s27, 16")
        else:
            a("s_and_b32 s60, s26, 0xffff0000"); a("s_and_b32 s61, s27, 0xffff0000")
        a("v_mov_b32 v%d, s60" % t0)
        exp_bf16(t0, vdt, t1)
        a("v_mov_b32 v%d, 0" % vD)
        a("v_writelane_b32 v%d, s61, 0" % vD)
        la, ai, cr, ci = raw[c]
        for r in raw[c]: a("v_lshlrev_b32 v%d, 16, v%d" % (r, r))
        al = V(); be = V(); bl = V()
        exp_bf16(la, al, t1)
        a("v_mul_f32 v%d, v%d, v%d" % (al, al, vdt))
        a("v_mul_f32 v%d, %s, v%d" % (al, hexf(-LOG2E), al))
        a("v_mul_f32 v%d, v%d, v%d" % (ai, ai, vdt))
        a("v_mul_f32 v%d, s64, v%d" % (be, ai))
        a("v_fma_f32 v%d, v%d, s64, -v%d" % (bl, ai, be))
        a("v_fma_f32 v%d, v%d, s65, v%d" % (bl, ai, bl))
        def anchor(d, sp, conj):
            if sp is None:
                a("v_exp_f32 v%d, v%d" % (t0, al))
                a("v_fract_f32 v%d, v%d" % (t1, be))
                a("v_add_f32 v%d, v%d, v%d" % (t1, t1, bl))
            else:
                a("v_mul_f32 v%d, s%d, v%d" % (t0, sp, al))
                a("v_mul_f32 v%d, s%d, v%d" % (t1, sp, be))
                a("v_exp_f32 v%d, v%d" % (t0, t0))
                a("v_fract_f32 v%d, v%d" % (t1, t1))
                a("v_fma_f32 v%d, v%d, s%d, v%d" % (t1, bl, sp, t1))
            a("v_cos_f32 v%d, v%d" % (t2, t1))
            a("v_sin_f32 v%d, v%d" % (t3, t1))
            a("v_mul_f32 v%d, v%d, v%d" % (d, t0, t2))
            if conj: a("v_mul_f32_e64 v%d, v%d, -v%d" % (d + 1, t0, t3))
            else:    a("v_mul_f32 v%d, v%d, v%d" % (d + 1, t0, t3))
        pk = [V() for _ in range(4)]
        pend = []
        pki = [0]
        def put(row, src, const=None):
            p = pk[pki[0] % 4]; pki[0] += 1
            if const is not None: a("v_mov_b32 v%d, %s" % (p, const))
            else: a("v_cvt_pk_f16_f32 v%d, v%d, v%d" % (p, src, src + 1))
            pend.append((row, p))
            if len(pend) == 2:
                (r0, p0), (r1, p1) = pend
                assert r0 // 4 == r1 // 4
                L.op("ds_write2_b32 v%d, v%d, v%d offset0:%d offset1:%d" % (vW[r0 // 4], p0, p1, (r0 % 4) * RS // 4, (r1 % 4) * RS // 4))
                pend.clear()
        def flush():
            if pend:
                r0, p0 = pend[0]
                L.op("ds_write_b32 v%d, v%d offset:%d" % (vW[r0 // 4], p0, (r0 % 4) * RS))
                pend.clear()
        m1 = V.mark()
        Y = {b: V(2) for b in range(1, 9)}
        tmp = [V(2), V(2)]
        anchor(Y[1], 66, False)
        put(0, None, "0x3c00"); put(1, Y[1])
        cmul(a, Y[2], Y[1], Y[1]); cmul(a, Y[3], Y[2], Y[1]); put(2, Y[2]); put(3, Y[3])
        cmul(a, Y[4], Y[2], Y[2]); cmul(a, Y[5], Y[4], Y[1]); put(4, Y[4]); put(5, Y[5])
        cmul(a, Y[6], Y[4], Y[2]); cmul(a, Y[7], Y[4], Y[3]); put(6, Y[6]); put(7, Y[7])
        cmul(a, Y[8], Y[4], Y[4]); put(8, Y[8])
        for b in range(1, 8):
            cmul(a, tmp[b & 1], Y[8], Y[b]); put(8 + b, tmp[b & 1])
        V.release(m1)
        fY = [V(4) for _ in range(4)]
        L.wait_all()
        for ks in range(4): L.op("ds_read_b128 %s, v%d offset:%d" % (vr(fY[ks], 4), vR, 64 * ks))
        G = {i: V(2) for i in range(8)}
        a("v_and_b32 v%d, 0x7fffffff, v%d" % (t0, cr))
        a("v_and_b32 v%d, 0x7fffffff, v%d" % (t1, ci))
        a("v_max_u32 v%d, v%d, v%d" % (t0, t0, t1))
        wave_max_u32(a, t0, 60)
        a("s_lshr_b32 s60, s60, 23")
        a("s_min_u32 s60, s60, 253")
        a("s_lshl_b32 s28, s60, 23")
        a("s_sub_u32 s60, 254, s60")
        a("s_lshl_b32 s60, s60, 23")
        a("v_mul_f32 v%d, s60, v%d" % (G[0], cr))
        a("v_mul_f32_e64 v%d, s60, -v%d" % (G[0] + 1, ci))
        bar()
        S = {i: V(2) for i in range(1, 8)}
        B = [V(2), V(2)]
        tmp = [V(2), V(2)]
        fX = [V(4) for _ in range(4)]
        acc = [V(4) for _ in range(3)]
        anchor(S[1], None, True)
        anchor(B[0], 67, True)
        cmul(a, S[2], S[1], S[1]); cmul(a, G[1], G[0], B[0])
        cmul(a, S[3], S[2], S[1]); cmul(a, S[4], S[2], S[2])
        cmul(a, S[5], S[4], S[1]); cmul(a, S[6], S[4], S[2]); cmul(a, S[7], S[4], S[3])
        L.wait_all()
        for aa in range(2):
            put(8 * aa, G[aa])
            for cc in range(1, 8):
                cmul(a, tmp[cc & 1], G[aa], S[cc]); put(8 * aa + cc, tmp[cc & 1])
        def tile_mfma(t):
            flush()
            L.wait_all()
            tk = [L.op("ds_read_b128 %s, v%d offset:%d" % (vr(fX[ks], 4), vR, 64 * ks)) for ks in range(4)]
            return tk
        def do_mfma(t, tk):
            for ks in range(4):
                L.wait(tk[ks])
                a("v_mfma_f32_16x16x32_f16 %s, %s, %s, %s" % (vr(acc[t], 4), vr(fX[ks], 4), vr(fY[ks], 4), "0" if ks == 0 else vr(acc[t], 4)))
        tk = tile_mfma(0)
        cmul(a, B[1], B[0], B[0])
        cmul(a, G[2], G[0], B[1]); cmul(a, G[3], G[1], B[1])
        cmul(a, B[0], B[1], B[1])
        do_mfma(0, tk)
        bar()
        for aa in range(2):
            put(4 * aa, G[2 + aa])
            for cc in range(1, 4):
                cmul(a, tmp[cc & 1], G[2 + aa], S[2 * cc]); put(4 * aa + cc, tmp[cc & 1])
        for aa in range(4):
            cmul(a, G[4 + aa], G[aa], B[0])
            cmul(a, tmp[aa & 1], G[4 + aa], S[4])
            put(8 + 2 * aa, G[4 + aa]); put(9 + 2 * aa, tmp[aa & 1])
        tk = tile_mfma(1)
        cmul(a, B[1], B[0], B[0])
        g8 = S[1]
        cmul(a, g8, G[0], B[1])
        do_mfma(1, tk)
        put(0, g8)
        for aa in range(1, 8):
            cmul(a, tmp[aa & 1], G[aa], B[1]); put(aa, tmp[aa & 1])
        cmul(a, tmp[0], g8, B[1]); put(8, tmp[0])
        tk = tile_mfma(2)
        do_mfma(2, tk)
        for t in range(3):
            for j in range(4):
                a("v_mul_f32 v%d, s28, v%d" % (acc[t] + j, acc[t] + j))
            L.op("ds_write_b128 v%d, %s offset:%d" % (vPW, vr(acc[t], 4), 4608 + 1024 * t))
        L.wait_all()
        bar()
        V.release(m1)
        P = [[V(4) for _ in range(3)] for _ in range(4)]
        for sw in range(4):
            for t in range(3):
                L.op("ds_read_b128 %s, v%d offset:%d" % (vr(P[sw][t], 4), vPR, 9216 * sw + 1024 * t))
        a("v_add_f32 v%d, v%d, v%d" % (vdt, vdt, vdt))
        L.wait_all()
        for t in range(3):
            for jj in range(2):
                r = lambda sw: vr(P[sw][t] + 2 * jj, 2)
                a("v_pk_add_f32 %s, %s, %s" % (r(0), r(0), r(1)))
                a("v_pk_add_f32 %s, %s, %s" % (r(2), r(2), r(3)))
                a("v_pk_add_f32 %s, %s, %s" % (r(0), r(0), r(2)))
        K = P[0]
        for t in range(3):
            for j in range(4):
                if t == 0 and j == 0: a("v_fma_f32 v%d, v%d, v%d, v%d" % (K[0], K[0], vdt, vD))
                else: a("v_mul_f32 v%d, v%d, v%d" % (K[t] + j, K[t] + j, vdt))
        a("v_max3_f32 v%d, |v%d|, |v%d|, |v%d|" % (t0, K[0], K[0] + 1, K[0] + 2))
        rest = [K[0] + 3] + [K[t] + j for t in (1, 2) for j in range(4)]
        for i in range(0, 8, 2):
            a("v_max3_f32 v%d, |v%d|, |v%d|, v%d" % (t0, rest[i], rest[i + 1], t0))
        a("v_max_f32_e64 v%d, |v%d|, v%d" % (t0, rest[8], t0))
        wave_max_u32(a, t0, 60)
        a("s_lshr_b32 s60, s60, 23")
        a("s_max_u32 s60, s60, 13")
        a("s_min_u32 s60, s60, 254")
        a("s_sub_u32 s61, s60, 13")
        a("s_lshl_b32 s61, s61, 23")
        a("s_sub_u32 s60, 267, s60")
        a("s_lshl_b32 s60, s60, 23")
        Kh = [V(2) for _ in range(3)]
        for t in range(3):
            for j in range(4): a("v_mul_f32 v%d, s60, v%d" % (K[t] + j, K[t] + j))
            for jj in range(2):
                a("v_cvt_pk_f16_f32 v%d, v%d, v%d" % (Kh[t] + jj, K[t] + 2 * jj, K[t] + 2 * jj + 1))
        L.op("ds_write_b64 v%d, %s offset:%d" % (vC0, vr(Kh[0], 2), KC))
        L.op("ds_write_b32 v%d, v%d offset:%d" % (vC1a, Kh[1], KC + 512))
        L.op("ds_write_b32 v%d, v%d offset:%d" % (vC1b, Kh[1] + 1, KC + 512))
        for j in range(4):
            L.op("%s v%d, v%d offset:%d" % ("ds_write_b16_d16_hi" if j & 1 else "ds_write_b16", vC2, Kh[2] + (j >> 1), KC + 1024 + 32 * j))
        L.wait_all()
        O = V(4); O2 = V(4)
        for e in range(8):
            L.op("ds_read_u16 v%d, v%d offset:%d" % ((O2 if e & 1 else O) + (e >> 1), vE[e], KC))
        a("s_lshl_b32 s62, s24, 1")
        if c: a("s_add_u32 s62, s62, 1")
        a("s_lshl_b32 s63, s62, 2")
        a("s_add_u32 s63, s63, 0x%x" % WS_KS)
        a("s_mul_i32 s62, s62, %d" % KROW)
        a("s_add_u32 s62, s62, 0x%x" % WS_K)
        L.wait_all()
        for j in range(4): a("v_lshl_or_b32 v%d, v%d, 16, v%d" % (O + j, O2 + j, O + j))
        a("buffer_store_dwordx4 %s, v%d, s[12:15], s62 offen offset:64" % (vr(O, 4), vSt))
        a("s_cmp_eq_u32 s22, 0")
        a("s_cbranch_scc0 L1_kg_nh%d" % c)
        Z = V(4)
        for j in range(4): a("v_mov_b32 v%d, 0" % (Z + j))
        a("v_mov_b32 v%d, s61" % t0)
        a("s_mov_b64 s[68:69], exec")
        a("s_mov_b64 exec, 15")
        a("buffer_store_dwordx4 %s, v%d, s[12:15], s62 offen" % (vr(Z, 4), vSt))
        a("s_mov_b64 exec, 1")
        a("buffer_store_dword v%d, v%d, s[12:15], s63 offen" % (t0, Z))
        a("s_mov_b64 exec, s[68:69]")
        a.label("L1_kg_nh%d" % c)
    print("k1 kgen barriers", barriers[0], "vgpr hi", V.hi)
    assert barriers[0] <= 7
    a("s_endpgm")

def misc_path(a):
    V = Alloc(8, 256)
    RS = 928
    srd(a, 4, 38, 2048 * 896)
    srd(a, 8, 36, 448 * 896)
    a("s_lshl_b32 s24, s20, 1")
    a("s_cmp_eq_u32 s21, %d" % MISC[1])
    a("s_addc_u32 s24, s24, 0")
    t0, t1, t2, t3 = V(), V(), V(), V()
    vl16 = V()
    a("v_lshlrev_b32 v%d, 4, v0" % vl16)
    a("s_mov_b64 s[68:69], exec")
    a("s_mov_b32 exec_lo, -1")
    a("s_mov_b32 exec_hi, 0x00ffffff")
    a("s_lshl_b32 s60, s24, 6")
    a("s_lshl_b32 s61, s22, 4")
    a("s_add_u32 s60, s60, s61")
    a("s_mul_i32 s60, s60, 896")
    a("s_mul_i32 s61, s61, %d" % RS)
    a("s_add_u32 s61, s61, %d" % AUX)
    for r in range(16):
        p = (r & 3) | ((r & 4) << 1) | ((r & 8) >> 1)
        a("s_add_u32 m0, s61, %d" % (p * RS))
        if r: a("s_add_u32 s60, s60, 896")
        a("buffer_load_dwordx4 v%d, s[4:7], s60 offen lds" % vl16)
    a("s_mul_i32 s60, s24, 14")
    a("s_lshl_b32 s61, s22, 2")
    a("s_add_u32 s60, s60, s61")
    a("s_mul_i32 s60, s60, 896")
    for rr in range(4):
        a("s_add_u32 s62, s61, %d" % rr)
        a("s_cmp_ge_u32 s62, 14")
        a("s_cbranch_scc1 L1_mi_skip%d" % rr)
        a("s_cmp_ge_u32 s62, 7")
        a("s_cselect_b32 s63, %d, 0" % (SLOT - 7 * RS))
        a("s_mul_i32 s62, s62, %d" % RS)
        a("s_add_u32 s62, s62, s63")
        a("s_add_u32 m0, s62, 24576")
        a("s_add_u32 s63, s60, %d" % (896 * rr))
        a("buffer_load_dwordx4 v%d, s[8:11], s63 offen lds" % vl16)
        a.label("L1_mi_skip%d" % rr)
    a("s_mov_b64 exec, s[68:69]")
    ticket_finish(a, "L1_mi_tk", 0)
    a("s_waitcnt vmcnt(0)")
    a("s_barrier")
    a("v_and_b32 v%d, 15, v0" % t0)
    a("v_lshrrev_b32 v%d, 4, v0" % t1)
    a("v_lshrrev_b32 v%d, 2, v%d" % (t2, t0))
    a("v_lshl_add_u32 v%d, v%d, 3, v%d" % (t2, t1, t2))
    vRa = [V(), V()]
    for hf in range(2):
        a("v_sub_u32 v%d, %d, v%d" % (t3, 31 - 4 * hf, t2))
        r = vRa[hf]
        a("v_and_b32 v%d, 0x13, v%d" % (r, t3))
        tq = V()
        a("v_and_b32 v%d, 4, v%d" % (tq, t3))
        a("v_lshl_add_u32 v%d, v%d, 1, v%d" % (r, tq, r))
        a("v_and_b32 v%d, 8, v%d" % (tq, t3))
        a("v_lshrrev_b32 v%d, 1, v%d" % (tq, tq))
        a("v_add_u32 v%d, v%d, v%d" % (r, r, tq))
        a("v_mul_u32_u24 v%d, %d, v%d" % (r, RS, r))
        a("v_and_b32 v%d, 3, v%d" % (tq, t0))
        a("v_lshl_add_u32 v%d, v%d, 3, v%d" % (r, tq, r))
        a("s_mul_i32 s60, s22, 224")
        a("s_add_u32 s60, s60, %d" % AUX)
        a("v_add_u32 v%d, s60, v%d" % (r, r))
    vSo = V()
    a("v_lshlrev_b32 v%d, 12, v%d" % (vSo, t0))
    a("v_lshl_add_u32 v%d, v%d, 4, v%d" % (vSo, t1, vSo))
    a("s_mul_i32 s60, s22, %d" % (112 * 4096))
    a("s_add_u32 s60, s60, 0x%x" % (WS_UT + 1984 * 2))
    a("s_lshl_b32 s61, s24, 7")
    a("s_sub_u32 s60, s60, s61")
    D = [V(4) for _ in range(14)]
    L = Lgkm(a)
    tks = []
    for ct in range(7):
        for th in range(2):
            d = D[2 * ct + th]
            for hf in range(2):
                tk = L.op("ds_read_b64_tr_b16 %s, v%d offset:%d" % (vr(d + 2 * hf, 2), vRa[hf], 32 * ct + (32 * RS if th == 0 else 0)))
            tks.append(tk)
            if len(tks) % 6 == 0 or len(tks) == 14:
                pass
        if ct in (2, 5, 6):
            lo = {2: 0, 5: 6, 6: 12}[ct]
            for u in range(lo, len(tks)):
                L.wait(tks[u])
                c2, th = divmod(u, 2)
                a("s_add_u32 s61, s60, %d" % (c2 * 16 * 4096))
                a("buffer_store_dwordx4 %s, v%d, s[12:15], s61 offen offset:%d" % (vr(D[u], 4), vSo, 64 * th))
            a("s_barrier")
    vWa = V()
    a("v_and_b32 v%d, 1, v%d" % (t2, t1))
    a("v_lshrrev_b32 v%d, 1, v%d" % (t3, t1))
    a("v_lshrrev_b32 v%d, 2, v%d" % (vWa, t0))
    a("v_mul_u32_u24 v%d, %d, v%d" % (vWa, RS, vWa))
    a("v_lshl_add_u32 v%d, v%d, 15, v%d" % (vWa, t2, vWa))
    a("v_lshl_add_u32 v%d, v%d, 3, v%d" % (vWa, t3, vWa))
    tq = V()
    a("v_and_b32 v%d, 3, v%d" % (tq, t0))
    a("v_lshl_add_u32 v%d, v%d, 4, v%d" % (vWa, tq, vWa))
    a("s_lshl_b32 s60, s22, 6")
    a("s_add_u32 s60, s60, 24576")
    a("v_add_u32 v%d, s60, v%d" % (vWa, vWa))
    vWo = V()
    a("v_lshlrev_b32 v%d, 4, v%d" % (vWo, t0))
    a("v_lshl_add_u32 v%d, v%d, 8, v%d" % (vWo, t2, vWo))
    a("v_lshl_add_u32 v%d, v%d, 10, v%d" % (vWo, t3, vWo))
    a("s_lshr_b32 s60, s22, 1")
    a("s_lshl_b32 s60, s60, 16")
    a("s_and_b32 s61, s22, 1")
    a("s_lshl_b32 s61, s61, 11")
    a("s_add_u32 s60, s60, s61")
    a("s_lshr_b32 s61, s24, 1")
    a("s_lshl_b32 s61, s61, 12")
    a("s_add_u32 s60, s60, s61")
    a("s_and_b32 s61, s24, 1")
    a("s_lshl_b32 s61, s61, 9")
    a("s_add_u32 s60, s60, s61")
    a("s_add_u32 s60, s60, 0x%x" % WS_WOF)
    W = [V(4) for _ in range(4)]
    for i in range(4):
        if i == 3:
            a("s_cmp_ge_u32 s22, 2")
            a("s_cbranch_scc1 L1_end")
        for hf in range(2):
            L.op("ds_read_b64_tr_b16 %s, v%d offset:%d" % (vr(W[i] + 2 * hf, 2), vWa, 256 * i + 4 * RS * hf))
        L.wait_all()
        a("v_and_b32 v%d, 0xffff, v%d" % (W[i] + 3, W[i] + 3))
        a("s_add_u32 s61, s60, %d" % (i * 131072))
        a("buffer_store_dwordx4 %s, v%d, s[12:15], s61 offen" % (vr(W[i], 4), vWo))
    print("k1 misc vgpr hi", V.hi)
    a("s_endpgm")
```

```python
from gen_common import *

KA, KB, U1, U0, CW = 0, 4224, 8448, 13024, 17664
RED = 4 * CW
CNT = RED + 4 * 12288
K2_LDS = CNT + 64
TSETS = [(7, 4, 2, 1), (6, 5, 3, 0)]

def lds_sync(a, lab, off, vz, vt):
    a("s_waitcnt lgkmcnt(0)")
    a("v_mov_b32 v%d, 1" % vt)
    a("s_mov_b64 s[68:69], exec")
    a("s_mov_b64 exec, 1")
    a("ds_add_u32 v%d, v%d offset:%d" % (vz, vt, off))
    a("s_mov_b64 exec, s[68:69]")
    a("s_mov_b32 s69, 0")
    a.label(lab)
    a("ds_read_b32 v%d, v%d offset:%d" % (vt, vz, off))
    a("s_add_u32 s69, s69, 1")
    a("s_cmp_gt_u32 s69, 0x100000")
    a("s_cbranch_scc1 %s_x" % lab)
    a("s_waitcnt lgkmcnt(0)")
    a("v_readfirstlane_b32 s68, v%d" % vt)
    a("s_cmp_lt_u32 s68, 4")
    a("s_cbranch_scc1 %s" % lab)
    a.label(lab + "_x")

def gen_k2(a):
    a(".p2align 8")
    a.label("p2_kernel")
    a("s_cmp_ge_u32 s2, 224")
    a("s_cbranch_scc1 L2_end")
    a("s_load_dwordx2 s[52:53], s[0:1], 80")
    a("s_load_dwordx2 s[56:57], s[0:1], 96")
    a("s_and_b32 s60, s2, 7")
    a("s_lshr_b32 s61, s2, 3")
    a("s_mul_i32 s20, s60, 28")
    a("s_add_u32 s20, s20, s61")
    a("v_lshrrev_b32 v1, 6, v0")
    a("v_and_b32 v0, 63, v0")
    a("v_readfirstlane_b32 s22, v1")
    a("v_mov_b32 v1, %d" % CNT)
    a("v_mov_b32 v2, 0")
    a("v_mov_b32 v3, 0")
    a("ds_write_b64 v1, v[2:3]")
    a("s_waitcnt lgkmcnt(0)")
    srd(a, 12, 56, WS_SIZE)
    srd(a, 16, 52, 2048 * 1792)
    a("s_cmp_ge_u32 s22, 4")
    a("s_cbranch_scc1 L2_a2")
    conv_path(a)
    a.label("L2_a2")
    a2_path(a)
    a.label("L2_end")
    a("s_endpgm")

def conv_path(a):
    V = Alloc(2, 256)
    a("s_cmp_ge_u32 s20, 112")
    a("s_cselect_b32 s21, 1, 0")
    a("s_cselect_b32 s60, 112, 0")
    a("s_sub_u32 s23, s20, s60")
    a("s_lshl_b32 s24, s23, 2")
    a("s_add_u32 s24, s24, s22")
    a("s_mul_i32 s25, s22, %d" % CW)
    vl16 = V()
    a("v_lshlrev_b32 v%d, 4, v0" % vl16)
    U = [V(4) for _ in range(4)]
    a("s_lshl_b32 s60, s24, 12")
    a("s_add_u32 s60, s60, 0x%x" % WS_UT)
    for k in range(4):
        a("buffer_load_dwordx4 %s, v%d, s[12:15], s60 offen offset:%d" % (vr(U[k], 4), vl16, 1024 * k))
    a("s_lshl_b32 s60, s24, 2")
    a("s_add_u32 s60, s60, 0x%x" % WS_KS)
    a("s_load_dword s26, s[56:57], s60")
    a("s_mul_i32 s60, s24, %d" % KROW)
    a("s_add_u32 s60, s60, 0x%x" % WS_K)
    a("s_add_u32 s61, s60, 4")
    for cp, (sreg, base) in enumerate(((60, KA), (61, KB))):
        a("s_add_u32 m0, s25, %d" % base)
        for k in range(4):
            a("buffer_load_dwordx4 v%d, s[12:15], s%d offen offset:%d lds" % (vl16, sreg, 1024 * k))
    a("s_mov_b64 exec, 15")
    for cp, (sreg, base) in enumerate(((60, KA), (61, KB))):
        a("s_add_u32 m0, s25, %d" % (base + 4096))
        a("s_add_u32 s62, s%d, 4096" % sreg)
        a("buffer_load_dwordx4 v%d, s[12:15], s62 offen lds" % vl16)
    a("s_mov_b64 exec, -1")
    a("s_barrier")
    t0, t1, t2, t3 = V(), V(), V(), V()
    Z = V(4)
    for j in range(4): a("v_mov_b32 v%d, 0" % (Z + j))
    vWr = V()
    a("v_add_u32 v%d, s25, v%d" % (vWr, vl16))
    a("s_mov_b64 exec, 0x0fffffff")
    a("ds_write_b128 v%d, %s offset:%d" % (vWr, vr(Z, 4), U1 + 4096))
    a("ds_write_b128 v%d, %s offset:%d" % (vWr, vr(Z, 4), U0 + 4096))
    a("s_mov_b64 exec, -1")
    vA = V(); vB = V()
    a("v_and_b32 v%d, 15, v0" % t0)
    a("v_lshrrev_b32 v%d, 4, v0" % t1)
    a("v_and_b32 v%d, 1, v%d" % (t2, t0))
    a("v_cmp_eq_u32 s[60:61], 1, v%d" % t2)
    a("v_mov_b32 v%d, %d" % (t2, KB))
    a("v_cndmask_b32 v%d, v%d, %d, s[60:61]" % (t2, t2, KA + 4))
    a("v_lshl_add_u32 v%d, v%d, 2, v%d" % (t2, t0, t2))
    a("v_lshl_add_u32 v%d, v%d, 4, v%d" % (t2, t1, t2))
    a("v_add_u32 v%d, s25, v%d" % (vA, t2))
    a("v_cmp_lt_u32 s[28:29], 7, v%d" % t0)
    a("v_mov_b32 v%d, %d" % (t2, U0 + 448))
    a("v_mov_b32 v%d, %d" % (t3, U1 + 448))
    a("v_cndmask_b32 v%d, v%d, v%d, s[28:29]" % (t2, t2, t3))
    a("v_and_b32 v%d, 7, v%d" % (t3, t0))
    a("v_lshlrev_b32 v%d, 6, v%d" % (t3, t3))
    a("v_sub_u32 v%d, v%d, v%d" % (t2, t2, t3))
    a("v_lshl_add_u32 v%d, v%d, 4, v%d" % (t2, t1, t2))
    a("v_add_u32 v%d, s25, v%d" % (vB, t2))
    vYw = V()
    a("v_lshrrev_b32 v%d, 3, v%d" % (t2, t0))
    a("v_lshl_add_u32 v%d, v%d, 3, v%d" % (t2, t2, t3))
    a("v_lshl_add_u32 v%d, v%d, 4, v%d" % (t2, t1, t2))
    a("v_add_u32 v%d, s25, v%d" % (vYw, t2))
    vS0 = V(); vS1 = V()
    a("v_mov_b32 v%d, 0x05040100" % t2); a("v_mov_b32 v%d, 0x01000504" % t3)
    a("v_cndmask_b32 v%d, v%d, v%d, s[28:29]" % (vS0, t2, t3))
    a("v_add_u32 v%d, 0x02020202, v%d" % (vS1, vS0))
    mk = V.mark()
    Ab = [V(4) for _ in range(4)]
    a("s_waitcnt vmcnt(10)")
    for k in range(4):
        for j in range(4):
            a("v_and_b32 v%d, 0x7fff7fff, v%d" % (Ab[k] + j, U[k] + j))
    a("v_pk_max_u16 v%d, v%d, v%d" % (t2, Ab[0], Ab[0] + 1))
    a("v_pk_max_u16 v%d, v%d, v%d" % (t3, Ab[0] + 2, Ab[0] + 3))
    for k in range(1, 4):
        for j in range(4):
            r = t2 if j & 1 else t3
            a("v_pk_max_u16 v%d, v%d, v%d" % (r, r, Ab[k] + j))
    a("v_pk_max_u16 v%d, v%d, v%d" % (t2, t2, t3))
    a("v_lshrrev_b32 v%d, 16, v%d" % (t3, t2))
    a("v_and_b32 v%d, 0xffff, v%d" % (t2, t2))
    a("v_max_u32 v%d, v%d, v%d" % (t2, t2, t3))
    wave_max_u32(a, t2, 60)
    a("s_lshr_b32 s60, s60, 7")
    a("s_max_u32 s60, s60, 30")
    a("s_sub_u32 s61, s60, 14")
    a("s_lshl_b32 s27, s61, 23")
    a("s_sub_u32 s60, s60, 29")
    a("s_lshl_b32 s60, s60, 7")
    a("s_mul_i32 s60, s60, 0x10001")
    a("s_mov_b32 s61, 0x80008000")
    for k in range(4):
        for j in range(4):
            r = Ab[k] + j
            a("v_pk_sub_u16 v%d, v%d, s60 clamp" % (r, r))
            a("v_pk_lshlrev_b16 v%d, 3, v%d op_sel_hi:[0,1]" % (r, r))
            a("v_and_or_b32 v%d, v%d, s61, v%d" % (r, U[k] + j, r))
        a("ds_write_b128 v%d, %s offset:%d" % (vWr, vr(Ab[k], 4), U1 + 1024 * k))
    for k in range(4):
        nx = U[k] + 3
        a("v_mov_b32_dpp v%d, v%d wave_shl:1 row_mask:0xf bank_mask:0xf" % (t2, Ab[k]))
        if k < 3:
            a("v_readlane_b32 s62, v%d, 0" % Ab[k + 1])
            a("v_writelane_b32 v%d, s62, 63" % t2)
        else:
            a("v_writelane_b32 v%d, 0, 63" % t2)
        for j in range(3):
            a("v_alignbit_b32 v%d, v%d, v%d, 16" % (U[k] + j, Ab[k] + j + 1, Ab[k] + j))
        a("v_alignbit_b32 v%d, v%d, v%d, 16" % (U[k] + 3, t2, Ab[k] + 3))
        a("ds_write_b128 v%d, %s offset:%d" % (vWr, vr(U[k], 4), U0 + 1024 * k))
    V.release(mk)
    fA = [[V(4) for _ in range(8)] for _ in range(2)]
    fB = [[V(4) for _ in range(8)] for _ in range(2)]
    acc = [V(4) for _ in range(4)]
    for r in acc:
        for j in range(4): a("v_mov_b32 v%d, 0" % (r + j))
    a("s_waitcnt vmcnt(0) lgkmcnt(0)")
    a("v_mov_b32 v%d, s26" % t2)
    a("v_mul_f32 v%d, s27, v%d" % (t2, t2))
    vSc = V(2)
    a("v_mov_b32 v%d, v%d" % (vSc, t2)); a("v_mov_b32 v%d, v%d" % (vSc + 1, t2))
    def variant(kap):
        T = TSETS[kap]; Jm = max(T)
        lab = "L2_cv%d" % kap
        def reads(buf, d):
            r = []
            for q in range(Jm + 1):
                r.append("ds_read_b128 %s, v%d offset:%d" % (vr(fB[buf][q], 4), vB, 512 * (7 - q) + d))
                r.append("ds_read_b64 %s, v%d offset:%d" % (vr(fA[buf][q], 2), vA, 512 * q + d))
                r.append("ds_read_b64 %s, v%d offset:%d" % (vr(fA[buf][q] + 2, 2), vA, 512 * q + 8 + d))
            return r
        def mfmas(buf):
            m = []
            for q in range(Jm + 1):
                for ti, J in enumerate(T):
                    if J >= q:
                        m.append("v_mfma_f32_16x16x32_f16 %s, %s, %s, %s" % (vr(acc[ti], 4), vr(fA[buf][q], 4), vr(fB[buf][J - q], 4), vr(acc[ti], 4)))
            return m
        for r in reads(0, 0): a(r)
        a("s_mov_b32 s60, 0")
        a.label(lab)
        for buf in range(2):
            a("s_waitcnt lgkmcnt(0)")
            rs = reads(1 - buf, 64 * (buf + 1)); ms = mfmas(buf)
            pos = 0
            for k, mm in enumerate(ms):
                a(mm)
                tgt = min(len(rs), (len(rs) * (k + 1) + len(ms) - 4) // (len(ms) - 3))
                while pos < tgt: a(rs[pos]); pos += 1
            assert pos == len(rs)
        a("v_add_u32 v%d, 128, v%d" % (vA, vA)) if False else a("v_add_u32 v%d, 0x80, v%d" % (vA, vA))
        a("v_add_u32 v%d, 0x80, v%d" % (vB, vB))
        a("s_add_u32 s60, s60, 1")
        a("s_cmp_lt_u32 s60, 4")
        a("s_cbranch_scc1 %s" % lab)
    a("s_cmp_eq_u32 s21, 0")
    a("s_cbranch_scc0 L2_cvk1")
    variant(0)
    a("s_branch L2_cvdone")
    a.label("L2_cvk1")
    variant(1)
    a.label("L2_cvdone")
    a("s_waitcnt lgkmcnt(0)")
    P = fA[0]
    for ti in range(4):
        p = P[ti]
        for jj in range(2):
            a("v_pk_mul_f32 %s, %s, %s" % (vr(acc[ti] + 2 * jj, 2), vr(acc[ti] + 2 * jj, 2), vr(vSc, 2)))
        a("v_cvt_pk_bf16_f32 v%d, v%d, v%d" % (p, acc[ti], acc[ti] + 1))
        a("v_cvt_pk_bf16_f32 v%d, v%d, v%d" % (p + 1, acc[ti] + 2, acc[ti] + 3))
        a("v_cndmask_b32 v%d, v%d, v%d, s[28:29]" % (p + 2, p + 1, p))
        a("v_cndmask_b32 v%d, v%d, v%d, s[28:29]" % (p + 3, p, p + 1))
    for ti in range(4):
        p = P[ti]; q = P[4 + ti]
        a("v_mov_b32_dpp v%d, v%d row_ror:8 row_mask:0xf bank_mask:0xf" % (q + 2, p + 2))
        a("v_perm_b32 v%d, v%d, v%d, v%d" % (q, q + 2, p + 3, vS0))
        a("v_perm_b32 v%d, v%d, v%d, v%d" % (q + 1, q + 2, p + 3, vS1))
        a("ds_write_b64 v%d, %s offset:%d" % (vYw, vr(q, 2), 512 * ti))
    lds_sync(a, "L2_cvsync", 0, 1, t2)
    a("s_lshl_b32 s60, s22, 9")
    a("v_lshl_add_u32 v%d, v0, 3, s60" % t2)
    R = fB[0]
    for c in range(4):
        a("ds_read_b64 %s, v%d offset:%d" % (vr(R[c], 2), t2, CW * c))
    tab = 0
    for kap in range(2):
        for w in range(4): tab |= TSETS[kap][w] << (4 * (4 * kap + w))
    a("s_lshl_b32 s60, s21, 2")
    a("s_add_u32 s60, s60, s22")
    a("s_lshl_b32 s60, s60, 2")
    a("s_lshr_b32 s60, 0x%x, s60" % tab)
    a("s_and_b32 s60, s60, 7")
    a("s_mul_i32 s60, s60, %d" % (256 * 1792))
    a("s_lshl_b32 s61, s23, 3")
    a("s_add_u32 s60, s60, s61")
    a("s_add_u32 s60, s60, 896")
    a("v_mul_u32_u24 v%d, %d, v0" % (t3, 4 * 1792))
    a("s_mov_b32 s62, 0x05040100")
    a("s_mov_b32 s63, 0x07060302")
    O = fB[1]
    a("s_waitcnt lgkmcnt(0)")
    for e in range(4):
        d = e >> 1; sel = 62 + (e & 1)
        a("v_perm_b32 v%d, v%d, v%d, s%d" % (O[e], R[1] + d, R[0] + d, sel))
        a("v_perm_b32 v%d, v%d, v%d, s%d" % (O[e] + 1, R[3] + d, R[2] + d, sel))
        if e == 2: a("s_add_u32 s60, s60, 3584")
        a("buffer_store_dwordx2 %s, v%d, s[16:19], s60 offen offset:%d" % (vr(O[e], 2), t3, 1792 * (e & 1)))
    print("k2 conv vgpr hi", V.hi)
    a("s_endpgm")

def a2_path(a):
    V = Alloc(2, 256)
    a("s_sub_u32 s22, s22, 4")
    a("s_mul_i32 s60, s20, 147")
    a("s_lshr_b32 s21, s60, 10")
    assert all((x * 147) >> 10 == x // 7 for x in range(200))
    bad = [x for x in range(224) if (x * 147) >> 10 != x // 7]
    if bad:
        a("s_mul_i32 s60, s20, 9363")
        a("s_lshr_b32 s21, s60, 16")
        assert all((x * 9363) >> 16 == x // 7 for x in range(224))
    a("s_mul_i32 s60, s21, 7")
    a("s_sub_u32 s23, s20, s60")
    t0 = V(2); t1 = t0 + 1; t2 = V(2); t3 = t2 + 1
    vK0 = V(2); vK1 = vK0 + 1
    vl16 = V(); vM = V()
    a("v_lshlrev_b32 v%d, 4, v0" % vl16)
    a("v_and_b32 v%d, 15, v0" % t0)
    a("v_lshrrev_b32 v%d, 4, v0" % t1)
    a("v_lshrrev_b32 v%d, 2, v%d" % (t2, t0))
    a("v_and_b32 v%d, 3, v%d" % (t3, t0))
    a("v_mul_u32_u24 v%d, 7, v%d" % (t2, t2))
    a("v_add_u32 v%d, v%d, v%d" % (t2, t2, t3))
    a("v_cmp_eq_u32 s[60:61], 3, v%d" % t3)
    a("v_add_u32 v%d, 4, v%d" % (t3, t2))
    a("v_cndmask_b32 v%d, v%d, 28, s[60:61]" % (t3, t3))
    a("v_mul_u32_u24 v%d, 112, v%d" % (vK0, t2))
    a("v_mul_u32_u24 v%d, 112, v%d" % (vK1, t3))
    a("v_lshl_add_u32 v%d, v%d, 5, v%d" % (vK0, t1, vK0))
    a("v_lshl_add_u32 v%d, v%d, 5, v%d" % (vK1, t1, vK1))
    acc = [[V(4) for _ in range(4)] for _ in range(4)]
    flat = [acc[i][k] for i in range(4) for k in range(4)]
    a("s_mul_i32 s60, s22, %d" % (4 * KVH))
    a("s_add_u32 s60, s60, 0x%x" % WS_KV)
    for hh in range(4):
        for tl in range(2):
            for hf in range(2):
                a("buffer_load_dwordx4 %s, v%d, s[12:15], s60 offen offset:%d" % (vr(flat[4 * hh + 2 * tl + hf], 4), vK1 if tl else vK0, 16 * hf))
        if hh < 3: a("s_add_u32 s60, s60, %d" % KVH)
    pq = [[V(4) for _ in range(4)] for _ in range(4)]
    wf = [[V(4) for _ in range(4)] for _ in range(4)]
    for r in range(4):
        a("s_add_u32 s60, s22, %d" % r)
        a("s_and_b32 s60, s60, 3")
        a("s_lshl_b32 s61, s21, 2")
        a("s_add_u32 s60, s60, s61")
        a("s_lshl_b32 s60, s60, 14")
        a("s_lshl_b32 s61, s22, 12")
        a("s_add_u32 s%d, s60, s61" % (24 + r))
    a("s_lshl_b32 s60, s23, 16")
    a("s_lshl_b32 s61, s22, 14")
    a("s_add_u32 s60, s60, s61")
    a("s_add_u32 s60, s60, 0x%x" % WS_WOF)
    for hh in range(4):
        for r in range(4):
            a("buffer_load_dwordx4 %s, v%d, s[12:15], s%d offen offset:%d" % (vr(pq[hh][r], 4), vl16, 24 + r, 1024 * hh))
        for ct in range(4):
            a("buffer_load_dwordx4 %s, v%d, s[12:15], s60 offen offset:%d" % (vr(wf[hh][ct], 4), vl16, 1024 * ct))
        if hh < 3: a("s_add_u32 s60, s60, 4096")
    a("s_barrier")
    a("v_cmp_gt_u32 s[60:61], 3, v%d" % t1)
    a("v_cndmask_b32 v%d, 0, -1, s[60:61]" % vM)
    kvf = [[V(4) for _ in range(2)] for _ in range(4)]
    for hh in range(4):
        a("s_waitcnt vmcnt(%d)" % (32 + 4 * (3 - hh)))
        for tl in range(2):
            lo = flat[4 * hh + 2 * tl]; hi = flat[4 * hh + 2 * tl + 1]; d = kvf[hh][tl]
            a("v_cvt_pk_bf16_f32 v%d, v%d, v%d" % (d, lo, lo + 1))
            a("v_cvt_pk_bf16_f32 v%d, v%d, v%d" % (d + 1, lo + 2, lo + 3))
            a("v_cvt_pk_bf16_f32 v%d, v%d, v%d" % (d + 2, hi, hi + 1))
            a("v_cvt_pk_bf16_f32 v%d, v%d, v%d" % (d + 3, hi + 2, hi + 3))
            a("v_and_b32 v%d, v%d, v%d" % (d + 2, vM, d + 2))
            a("v_and_b32 v%d, v%d, v%d" % (d + 3, vM, d + 3))
    N = [[V(4), V(4)] for _ in range(2)]
    rc = [t2, vK0]
    of = pq
    for hh in range(4):
        a("s_waitcnt vmcnt(%d)" % (8 * (3 - hh) + 4))
        for r in range(4):
            a("v_and_b32 v%d, v%d, v%d" % (pq[hh][r] + 2, vM, pq[hh][r] + 2))
            a("v_and_b32 v%d, v%d, v%d" % (pq[hh][r] + 3, vM, pq[hh][r] + 3))
        for rp in range(2):
            for k in range(2):
                r = 2 * rp + k
                for tl in range(2):
                    a("v_mfma_f32_16x16x32_bf16 %s, %s, %s, 0" % (vr(N[k][tl], 4), vr(kvf[hh][tl], 4), vr(pq[hh][r], 4)))
            for k in range(2):
                a("v_add_f32 v%d, %s, v%d" % (rc[k], hexf(1e-6), N[k][1] + 3))
            for k in range(2):
                a("v_rcp_f32 v%d, v%d" % (rc[k], rc[k]))
            for k in range(2):
                r = 2 * rp + k
                n0, n1 = N[k]; d = of[hh][r]
                for (x) in (n0, n0 + 2, n1):
                    a("v_pk_mul_f32 %s, %s, %s op_sel_hi:[1,0]" % (vr(x, 2), vr(x, 2), vr(rc[k], 2)))
                a("v_mul_f32 v%d, v%d, v%d" % (n1 + 2, n1 + 2, rc[k]))
                a("v_cvt_pk_bf16_f32 v%d, v%d, v%d" % (d, n0, n0 + 1))
                a("v_cvt_pk_bf16_f32 v%d, v%d, v%d" % (d + 1, n0 + 2, n0 + 3))
                a("v_cvt_pk_bf16_f32 v%d, v%d, v%d" % (d + 2, n1, n1 + 1))
                a("v_cvt_pk_bf16_f32 v%d, v%d, 0" % (d + 3, n1 + 2))
        a("s_waitcnt vmcnt(%d)" % (8 * (3 - hh)))
        for r in range(4):
            for ct in range(4):
                a("v_mfma_f32_16x16x32_bf16 %s, %s, %s, %s" % (vr(acc[ct][r], 4), vr(wf[hh][ct], 4), vr(of[hh][r], 4), "0" if hh == 0 else vr(acc[ct][r], 4)))
    for r in range(1, 4):
        a("s_add_u32 s60, s22, %d" % r)
        a("s_and_b32 s60, s60, 3")
        a("s_mul_i32 s60, s60, 12288")
        a("s_add_u32 s60, s60, %d" % (RED + 4096 * (r - 1)))
        a("v_add_u32 v%d, s60, v%d" % (t2, vl16))
        for ct in range(4):
            a("ds_write_b128 v%d, %s offset:%d" % (t2, vr(acc[ct][r], 4), 1024 * ct))
    lds_sync(a, "L2_a2sync", 4, 1, t2)
    a("s_mul_i32 s60, s22, 12288")
    a("s_add_u32 s60, s60, %d" % RED)
    a("v_add_u32 v%d, s60, v%d" % (t2, vl16))
    for r in range(1, 4):
        for ct in range(4):
            a("ds_read_b128 %s, v%d offset:%d" % (vr(acc[ct][r], 4), t2, 4096 * (r - 1) + 1024 * ct))
    a("v_mul_u32_u24 v%d, 1792, v%d" % (t3, t0))
    a("v_lshl_add_u32 v%d, v%d, 4, v%d" % (t3, t1, t3))
    a("s_lshl_b32 s60, s21, 2")
    a("s_add_u32 s60, s60, s22")
    a("s_mul_i32 s60, s60, %d" % (16 * 1792))
    a("s_lshl_b32 s61, s23, 7")
    a("s_add_u32 s60, s60, s61")
    a("s_waitcnt lgkmcnt(0)")
    O = [wf[0][0], wf[0][1]]
    for ct in range(4):
        for jj in range(2):
            x = lambda r: vr(acc[ct][r] + 2 * jj, 2)
            a("v_pk_add_f32 %s, %s, %s" % (x(0), x(0), x(1)))
            a("v_pk_add_f32 %s, %s, %s" % (x(2), x(2), x(3)))
            a("v_pk_add_f32 %s, %s, %s" % (x(0), x(0), x(2)))
            a("v_cvt_pk_bf16_f32 v%d, v%d, v%d" % (O[ct >> 1] + 2 * (ct & 1) + jj, acc[ct][0] + 2 * jj, acc[ct][0] + 2 * jj + 1))
        if ct & 1:
            a("buffer_store_dwordx4 %s, v%d, s[16:19], s60 offen offset:%d" % (vr(O[ct >> 1], 4), t3, 64 * (ct >> 1)))
    print("k2 a2 vgpr hi", V.hi)
    a("s_endpgm")
```

```python
import sys
from gen_common import *
import gen_k1, gen_k2
def build_text():
    hdr = open("concat_heads__linear_attn_block__ssm_conv_s4d__prompt.s.ref").read().split("; Override launch")[0]
    hdr += "; @launch kernel=p1_kernel grid=(256,1,1) block=(512,1,1) lds=%d\n" % gen_k1.K1_LDS
    hdr += "; @launch kernel=p2_kernel grid=(224,1,1) block=(512,1,1) lds=%d\n" % gen_k2.K2_LDS
    out = hdr + '.amdgcn_target "amdgcn-amd-amdhsa--gfx950"\n.text\n'
    for name, g in (("p1_kernel", gen_k1.gen_k1), ("p2_kernel", gen_k2.gen_k2)):
        a = Asm()
        a(".globl %s" % name); a(".type %s,@function" % name)
        g(a)
        out += a.text()
    out += kernel_desc("p1_kernel", 256, 102, 256)
    out += kernel_desc("p2_kernel", 256, 102, 256)
    return out
if __name__ == "__main__":
    dst = sys.argv[1] if len(sys.argv) > 1 else "concat_heads__linear_attn_block__ssm_conv_s4d__prompt.s"
    open(dst, "w").write(build_text())
```
